```python
import torch

def _softmax(x, axis=-1):
    return torch.softmax(x, dim=axis)

def _gelu(x):
    return torch.nn.functional.gelu(x, approximate='tanh')

def _silu(x):
    return torch.nn.functional.silu(x)

def _sigmoid(x):
    return torch.sigmoid(x)

def _layernorm(x, axis=-1, eps=1e-05):
    m = x.mean(dim=axis, keepdim=True)
    v = x.var(dim=axis, keepdim=True, unbiased=False)
    return (x - m) / torch.sqrt(v + eps)

def _scatter_add(tgt, idx, src, axis=0):
    return tgt.clone().index_add_(axis, idx, src)

def _segment_sum(src, seg, n):
    out = torch.zeros((n,) + src.shape[1:], dtype=src.dtype)
    return out.index_add_(0, seg, src)

def _pad(x, pw):
    flat = tuple((v for pair in reversed(pw) for v in pair))
    return torch.nn.functional.pad(x, flat)
kernel_name = 'adaLN_cond__ssm_conv_h3__glu_gated_reglu__prompt'

def setup_inputs():

    _w = lambda a: (lambda t: t.to(torch.bfloat16) if t.is_floating_point() else t)(torch.as_tensor(a))

    def _A_setup():
        B, S, D = (1, 2048, 640)
        ks = 4
        return {'q': _w((lambda *s: torch.randn(*s, dtype=torch.bfloat16) * 0.05)(B, S, D)), 'k': _w((lambda *s: torch.randn(*s, dtype=torch.bfloat16) * 1.6)(B, S, D)), 'v': _w((lambda *s: torch.randn(*s, dtype=torch.bfloat16) * 1.6)(B, S, D)), 'shift_k': _w((lambda *s: torch.randn(*s, dtype=torch.bfloat16) * 1.6)(D, ks) * 0.5), 'ssm_k': _w((lambda *s: torch.randn(*s, dtype=torch.bfloat16) * 1.6)(D, S) * (1.0 / S ** 0.5)), 'ssm_D': _w((lambda *s: torch.randn(*s, dtype=torch.bfloat16) * 1.6)(D))}
    _A_in = _A_setup()

    def _B_setup():
        B, S, D, F = (1, 2048, 640, 1728)
        return {'x': _w((lambda *s: torch.randn(*s, dtype=torch.bfloat16) * 0.05)(B, S, D)), 'W_gate': _w((lambda *s: torch.randn(*s, dtype=torch.bfloat16) * 3.2)(D, F) * (2.0 / D) ** 0.5), 'W_up': _w((lambda *s: torch.randn(*s, dtype=torch.bfloat16) * 3.2)(D, F) * (2.0 / D) ** 0.5), 'W_down': _w((lambda *s: torch.randn(*s, dtype=torch.bfloat16) * 3.2)(F, D) * (1.0 / F) ** 0.5)}
    _B_in = _B_setup()
    return {'A_q': _A_in['q'], 'A_k': _A_in['k'], 'A_v': _A_in['v'], 'A_shift_k': _A_in['shift_k'], 'A_ssm_k': _A_in['ssm_k'], 'A_ssm_D': _A_in['ssm_D'], 'B_x': _B_in['x'], 'B_W_gate': _B_in['W_gate'], 'B_W_up': _B_in['W_up'], 'B_W_down': _B_in['W_down'], 'c': _w((lambda *s: torch.randn(*s, dtype=torch.bfloat16) * 0.1)(1, 640) * 8.0), 'w_mod': _w((lambda *s: torch.randn(*s, dtype=torch.bfloat16) * 0.1)(640, 6 * 640) * 640 ** (-0.5) * 8.0)}

def reference(A_q, A_k, A_v, A_shift_k, A_ssm_k, A_ssm_D, B_x, B_W_gate, B_W_up, B_W_down, c, w_mod):

    def _A_ref(q, k, v, shift_k, ssm_k, ssm_D):
        B, S, D = q.shape
        ks = shift_k.shape[-1]
        k_pad = _pad(k, ((0, 0), (ks - 1, 0), (0, 0)))
        k_shift = torch.zeros_like(k)
        for t in range(ks):
            k_shift = k_shift + k_pad[:, t:t + S, :] * shift_k[:, ks - 1 - t][None, None, :]
        kv = k_shift * v
        L = 2 * S
        kv_pad = _pad(kv, ((0, 0), (0, S), (0, 0)))
        kf_pad = _pad(ssm_k, ((0, 0), (0, S)))
        kv_f = (lambda x, axes=(-2, -1): torch.fft.rfft2(x.float(), dim=axes))(kv_pad[:, None, :, :], axes=(1, 2))
        kf_f = (lambda x, axes=(-2, -1): torch.fft.rfft2(x.float(), dim=axes))(kf_pad[:, None, :], axes=(1, 2))
        kf_f = (lambda x, *d: x.permute(*d))(kf_f, 1, 2, 0)
        y_f = kv_f * kf_f[None, :, :, :]
        y = (lambda x, s, axes=(-2, -1): torch.fft.irfft2(x, s=s, dim=axes).to(torch.bfloat16))(y_f, (1, L), axes=(1, 2))[:, 0, :S, :]
        y = y + kv * ssm_D[None, None, :]
        return q * y

    def _B_ref(x, W_gate, W_up, W_down):
        gate = torch.einsum('bsd,df->bsf', x, W_gate)
        up = torch.einsum('bsd,df->bsf', x, W_up)
        gate = gate * (lambda x, dt: x.to(dt))(gate > 0, gate.dtype)
        h = gate * up
        return torch.einsum('bsf,fd->bsd', h, W_down)
    x = A_q
    mod = (_silu(c) @ w_mod).reshape(c.shape[0], 6, 1, -1)
    sa, ca, ga, sb, cb, gb = (mod[:, 0].clone(), mod[:, 1].clone(), mod[:, 2].clone(), mod[:, 3].clone(), mod[:, 4].clone(), mod[:, 5].clone())
    h = _layernorm(x, axis=-1) * (1 + ca) + sa
    x = x + ga * _A_ref(h, A_k, A_v, A_shift_k, A_ssm_k, A_ssm_D)
    h = _layernorm(x, axis=-1) * (1 + cb) + sb
    x = x + gb * _B_ref(h, B_W_gate, B_W_up, B_W_down)
    return x
```

```python
class Asm:
    def __init__(self):
        self.lines = []
        self.uid = 0
    def __call__(self, s):
        for ln in s.split('\n'):
            ln = ln.strip()
            if not ln:
                continue
            if ln.endswith(':') or ln.startswith('.') or ln.startswith(';'):
                self.lines.append(ln)
            else:
                self.lines.append('    ' + ln)
    def label(self, base):
        self.uid += 1
        return f"L_{base}_{self.uid}"
    def text(self):
        return '\n'.join(self.lines) + '\n'

def srd(a, d, b, nbytes, off=0):
    if off:
        a(f"s_add_u32 s{d}, s{b}, {hex(off)}")
        a(f"s_addc_u32 s{d+1}, s{b+1}, 0")
    else:
        a(f"s_mov_b32 s{d}, s{b}")
        a(f"s_mov_b32 s{d+1}, s{b+1}")
    a(f"s_mov_b32 s{d+2}, {hex(nbytes)}")
    a(f"s_mov_b32 s{d+3}, 0x20000")

def vr(i, n=1):
    return f"v{i}" if n == 1 else f"v[{i}:{i+n-1}]"
def ar(i, n=1):
    return f"a{i}" if n == 1 else f"a[{i}:{i+n-1}]"
def sr(i, n=1):
    return f"s{i}" if n == 1 else f"s[{i}:{i+n-1}]"

def kdesc(name, vgpr, sgpr=96, accum=None):
    if accum is None:
        accum = (vgpr + 3) // 4 * 4
    return f""".section .rodata,"a"
.p2align 6
.amdhsa_kernel {name}
  .amdhsa_next_free_vgpr {vgpr}
  .amdhsa_next_free_sgpr {sgpr}
  .amdhsa_accum_offset {accum}
  .amdhsa_group_segment_fixed_size 0
  .amdhsa_kernarg_size 120
  .amdhsa_user_sgpr_count 2
  .amdhsa_user_sgpr_kernarg_segment_ptr 1
  .amdhsa_system_sgpr_workgroup_id_x 1
  .amdhsa_float_denorm_mode_32 3
.end_amdhsa_kernel
"""
```

```python
import sys
from asmlib import *

NAME = "adaLN_cond__ssm_conv_h3__glu_gated_reglu__prompt"
U_OFF, QX_OFF, X1_OFF = 0, 0x280000, 0x500000
W1P_OFF, W2P_OFF, HH_OFF = 0x780000, 0xBB8000, 0xDD4000
ST_OFF, MOD_OFF, C12_OFF, STAMP_OFF = 0x1494000, 0x1498000, 0x149C000, 0x14C0000
ACT = 2621440
STAMPS = '--stamps' in sys.argv

def stamp(a, kidx, slot, sws, tmp_s=90, tmp_v=None):
    if not STAMPS: return
    a(f"s_memrealtime s[{70+2*slot}:{71+2*slot}]")

def stamp_flush(a, kidx, nslots, sws, v0, v1):
    if not STAMPS: return
    a(f"s_waitcnt vmcnt(0) lgkmcnt(0)")
    a(f"s_memrealtime s[{70+2*nslots}:{71+2*nslots}]")
    srd(a, 64, sws, 0x40000, STAMP_OFF)
    a(f"s_lshl_b32 s68, s2, 6")
    a(f"s_add_u32 s68, s68, {kidx*0x10000}")
    a(f"s_waitcnt lgkmcnt(0)")
    a(f"v_readfirstlane_b32 s69, v0")
    l = a.label("nost")
    a(f"s_cmp_ge_u32 s69, 64")
    a(f"s_cbranch_scc1 {l}")
    a(f"v_mov_b32 v{v1}, 0")
    for i in range(nslots+1):
        a(f"v_mov_b32 v{v0}, s{70+2*i}")
        a(f"buffer_store_dword v{v0}, v{v1}, s[64:67], s68 offen offset:{8*i}")
        a(f"s_nop 1")
    a(f"{l}:")

def unpack(a, lo, hi, src):
    a(f"v_lshlrev_b32 v{lo}, 16, v{src}")
    a(f"v_and_b32 v{hi}, 0xffff0000, v{src}")

def k0(a):
    a(".p2align 8"); a("k0_kernel:")
    stamp(a, 0, 0, 16)
    a("""
    s_cmp_ge_u32 s2, 640
    s_cbranch_scc1 k0_end
    s_load_dwordx8 s[4:11], s[0:1], 0
    s_load_dwordx4 s[12:15], s[0:1], 80
    s_load_dwordx2 s[16:17], s[0:1], 112
    s_cmp_lt_u32 s2, 256
    s_cbranch_scc1 k0_mod
    s_cmp_lt_u32 s2, 320
    s_cbranch_scc1 k0_stat
    """)
    a("""
    s_sub_u32 s3, s2, 320
    s_and_b32 s18, s3, 31
    s_lshr_b32 s19, s3, 5
    s_mul_i32 s20, s18, 81920
    s_lshl_b32 s21, s19, 7
    s_add_u32 s20, s20, s21
    v_bfe_u32 v1, v0, 3, 3
    v_and_b32 v2, 7, v0
    v_lshrrev_b32 v3, 6, v0
    v_lshl_add_u32 v2, v3, 3, v2
    v_mul_u32_u24 v4, 10240, v1
    v_lshl_add_u32 v4, v2, 2, v4
    v_add_u32 v4, s20, v4
    v_subrev_u32 v5, 3840, v4
    s_lshl_b32 s22, s19, 9
    v_lshl_add_u32 v6, v2, 4, s22
    s_lshl_b32 s23, s19, 18
    s_lshl_b32 s21, s18, 7
    s_add_u32 s23, s23, s21
    v_lshlrev_b32 v7, 13, v2
    v_lshl_add_u32 v7, v1, 4, v7
    v_add_u32 v7, s23, v7
    v_add_u32 v8, 4096, v7
    s_movk_i32 s22, 5120
    s_waitcnt lgkmcnt(0)
    """)
    srd(a, 24, 6, ACT); srd(a, 28, 8, ACT); srd(a, 32, 10, 5120); srd(a, 36, 16, ACT, U_OFF)
    a("buffer_load_dwordx4 v[32:35], v6, s[32:35], 0 offen")
    for j in range(3): a(f"buffer_load_dword v{10+j}, v5, s[24:27], 0 offen offset:{1280*j}")
    for j in range(8): a(f"buffer_load_dword v{13+j}, v4, s[24:27], {'0' if j<4 else 's22'} offen offset:{1280*(j%4)}")
    for j in range(8): a(f"buffer_load_dword v{21+j}, v4, s[28:31], {'0' if j<4 else 's22'} offen offset:{1280*(j%4)}")
    a("s_waitcnt vmcnt(19)")
    a("v_lshlrev_b32 v36, 16, v32"); a("v_lshlrev_b32 v37, 16, v34")
    a("v_and_b32 v38, 0xffff0000, v32"); a("v_and_b32 v39, 0xffff0000, v34")
    a("v_lshlrev_b32 v40, 16, v33"); a("v_lshlrev_b32 v41, 16, v35")
    a("v_and_b32 v42, 0xffff0000, v33"); a("v_and_b32 v43, 0xffff0000, v35")
    a("s_waitcnt vmcnt(8)")
    for j in range(11): unpack(a, 44+2*j, 45+2*j, 10+j)
    K = lambda r: f"v[{44+2*(r+3)}:{45+2*(r+3)}]"
    for r in range(8): a(f"v_pk_mul_f32 v[{66+2*r}:{67+2*r}], {K(r-3)}, v[42:43]")
    for j in (2, 1, 0):
        for r in range(8): a(f"v_pk_fma_f32 v[{66+2*r}:{67+2*r}], {K(r-j)}, v[{36+2*j}:{37+2*j}], v[{66+2*r}:{67+2*r}]")
    a("s_waitcnt vmcnt(0)")
    for r in range(8): unpack(a, 44+2*r, 45+2*r, 21+r)
    for r in range(8): a(f"v_pk_mul_f32 v[{66+2*r}:{67+2*r}], v[{66+2*r}:{67+2*r}], v[{44+2*r}:{45+2*r}]")
    for c in range(2):
        for j in range(4): a(f"v_cvt_pk_bf16_f32 v{12+4*c+j}, v{66+2*(7-2*j)+c}, v{66+2*(6-2*j)+c}")
    a("buffer_store_dwordx4 v[12:15], v7, s[36:39], 0 offen")
    a("buffer_store_dwordx4 v[16:19], v8, s[36:39], 0 offen")
    a("s_branch k0_fin")
    a("k0_stat:")
    a("""
    s_sub_u32 s3, s2, 256
    v_and_b32 v1, 15, v0
    v_lshrrev_b32 v2, 4, v0
    s_mul_i32 s20, s3, 40960
    v_mul_u32_u24 v4, 2560, v1
    v_lshl_add_u32 v4, v2, 4, v4
    s_lshl_b32 s21, s3, 8
    v_lshlrev_b32 v5, 15, v2
    v_lshl_add_u32 v5, v1, 4, v5
    v_add_u32 v5, s21, v5
    v_add_u32 v6, 16384, v5
    s_mov_b32 s22, 0x3f803f80
    v_mov_b32 v50, 0
    v_mov_b32 v51, 0
    v_mov_b32 v52, 0
    v_mov_b32 v53, 0
    s_waitcnt lgkmcnt(0)
    """)
    srd(a, 24, 4, ACT); srd(a, 28, 16, ACT, QX_OFF); srd(a, 32, 16, 16384, ST_OFF)
    for it in range(5):
        a(f"buffer_load_dwordx4 v[{8+8*it}:{11+8*it}], v4, s[24:27], s20 offen offset:{256*it}")
        a(f"buffer_load_dwordx4 v[{12+8*it}:{15+8*it}], v4, s[24:27], s20 offen offset:{256*it+1280}")
    a("s_mov_b32 s23, 0")
    for it in range(5):
        a(f"s_waitcnt vmcnt(8)")
        b = 8+8*it
        for j in range(4):
            a(f"v_dot2c_f32_bf16 v50, s22, v{b+j}")
            a(f"v_dot2c_f32_bf16 v51, v{b+j}, v{b+j}")
            a(f"v_dot2c_f32_bf16 v52, s22, v{b+4+j}")
            a(f"v_dot2c_f32_bf16 v53, v{b+4+j}, v{b+4+j}")
        a(f"v_swap_b32 v{b+2}, v{b+4}")
        a(f"v_swap_b32 v{b+3}, v{b+5}")
        a(f"buffer_store_dwordx4 v[{b}:{b+3}], v5, s[28:31], s23 offen")
        a(f"buffer_store_dwordx4 v[{b+4}:{b+7}], v6, s[28:31], s23 offen")
        a(f"s_add_u32 s23, s23, {16*32768}")
    a("""
    v_lshlrev_b32 v7, 4, v0
    s_nop 2
    ds_write_b128 v7, v[50:53]
    v_and_b32 v1, 31, v0
    v_lshlrev_b32 v7, 3, v1
    s_waitcnt lgkmcnt(0)
    s_barrier
    """)
    for i in range(16): a(f"ds_read_b64 v[{56+2*i}:{57+2*i}], v7 offset:{256*i}")
    a("s_waitcnt lgkmcnt(0)")
    for st in (8, 4, 2, 1):
        for i in range(st): a(f"v_pk_add_f32 v[{56+2*i}:{57+2*i}], v[{56+2*i}:{57+2*i}], v[{56+2*(i+st)}:{57+2*(i+st)}]")
    a("""
    v_mul_f32 v56, 0x3acccccd, v56
    v_mul_f32 v57, 0x3acccccd, v57
    v_fma_f32 v57, -v56, v56, v57
    v_max_f32 v57, 0, v57
    v_add_f32 v57, 0x3727c5ac, v57
    v_rsq_f32 v58, v57
    v_add_u32 v7, s21, v7
    v_mul_f32 v59, v56, v58
    v_sub_f32 v59, 0, v59
    v_cmp_gt_u32 vcc, 32, v0
    s_and_saveexec_b64 s[40:41], vcc
    s_cbranch_execz k0_fin
    buffer_store_dwordx2 v[58:59], v7, s[32:35], 0 offen
    s_branch k0_fin
    """)
    a("k0_mod:")
    a("""
    s_and_b32 s18, s2, 7
    s_lshr_b32 s19, s2, 5
    s_lshl_b32 s19, s19, 3
    s_add_u32 s18, s18, s19
    s_cmp_ge_u32 s18, 60
    s_cbranch_scc1 k0_end
    s_bfe_u32 s19, s2, 0x20003
    s_lshl_b32 s18, s18, 6
    s_lshl_b32 s19, s19, 4
    s_add_u32 s18, s18, s19
    s_lshl_b32 s20, s18, 1
    v_lshrrev_b32 v1, 1, v0
    v_and_b32 v2, 1, v0
    v_mul_u32_u24 v4, 7680, v1
    v_lshl_add_u32 v4, v2, 4, v4
    v_lshlrev_b32 v5, 1, v1
    s_waitcnt lgkmcnt(0)
    """)
    srd(a, 24, 12, 1280); srd(a, 28, 14, 640*7680); srd(a, 32, 16, 15360, MOD_OFF)
    for it in range(5): a(f"buffer_load_ushort v{8+it}, v5, s[24:27], 0 offen offset:{256*it}")
    for it in range(5):
        a(f"buffer_load_dwordx4 v[{16+4*it}:{19+4*it}], v4, s[28:31], s20 offen")
        if it < 4: a(f"s_add_u32 s20, s20, 983040")
    a("s_waitcnt vmcnt(5)")
    for it in range(5): a(f"v_lshlrev_b32 v{8+it}, 16, v{8+it}")
    for it in range(5): a(f"v_mul_f32 v{40+it}, 0xbfb8aa3b, v{8+it}")
    for it in range(5): a(f"v_exp_f32 v{40+it}, v{40+it}")
    for it in range(5): a(f"v_add_f32 v{40+it}, 1.0, v{40+it}")
    for it in range(5): a(f"v_rcp_f32 v{40+it}, v{40+it}")
    for it in range(5): a(f"v_mul_f32 v{40+it}, v{8+it}, v{40+it}")
    for it in range(5): a(f"v_cvt_pk_bf16_f32 v{40+it}, v{40+it}, v{40+it}")
    for it in range(5): a(f"v_lshlrev_b32 v{40+it}, 16, v{40+it}")
    for it in range(5):
        a(f"s_waitcnt vmcnt({4-it})")
        for j in range(4):
            unpack(a, 56+2*j, 57+2*j, 16+4*it+j)
        for j in range(8):
            if it == 0: a(f"v_mul_f32 v{48+j}, v{40+it}, v{56+j}")
            else: a(f"v_fmac_f32 v{48+j}, v{40+it}, v{56+j}")
    a("""
    v_mul_u32_u24 v6, 80, v1
    v_lshl_add_u32 v6, v2, 5, v6
    ds_write_b128 v6, v[48:51]
    ds_write_b128 v6, v[52:55] offset:16
    v_and_b32 v1, 15, v0
    v_lshrrev_b32 v2, 4, v0
    v_mul_u32_u24 v6, 80, v1
    v_lshl_add_u32 v6, v2, 2, v6
    s_waitcnt lgkmcnt(0)
    s_barrier
    """)
    for i in range(8): a(f"ds_read_b32 v{8+i}, v6 offset:{1280*i}")
    a("s_waitcnt lgkmcnt(0)")
    for st in (4, 2, 1):
        for i in range(st): a(f"v_add_f32 v{8+i}, v{8+i}, v{8+i+st}")
    for sh in (8, 4, 2, 1):
        a("s_nop 1")
        a(f"v_add_f32_dpp v8, v8, v8 row_ror:{sh} row_mask:0xf bank_mask:0xf")
    a("""
    v_cvt_pk_bf16_f32 v8, v8, v8
    v_lshlrev_b32 v8, 16, v8
    v_add_lshl_u32 v6, v2, s18, 2
    v_cmp_eq_u32 vcc, 0, v1
    s_and_saveexec_b64 s[40:41], vcc
    buffer_store_dword v8, v6, s[32:35], 0 offen
    """)
    a("k0_fin:")
    a("s_mov_b64 exec, -1")
    stamp_flush(a, 0, 1, 16, 1, 2)
    a("k0_end:")
    a("s_endpgm")

HO, UB, WREG, YB, YST = 4160, 8320, 12928, 51712, 4160
def k1(a):
    a(".p2align 8"); a("k1_kernel:")
    stamp(a, 1, 0, 16)
    a("""
    s_cmp_ge_u32 s2, 254
    s_cbranch_scc1 k1_end
    s_load_dwordx4 s[4:7], s[0:1], 32
    s_load_dwordx4 s[8:11], s[0:1], 56
    s_load_dwordx2 s[12:13], s[0:1], 72
    s_load_dwordx2 s[16:17], s[0:1], 112
    v_lshrrev_b32 v1, 6, v0
    v_and_b32 v2, 63, v0
    s_nop 0
    v_readfirstlane_b32 s3, v1
    s_cmp_ge_u32 s2, 214
    s_cbranch_scc1 k1_w2
    s_cmp_ge_u32 s2, 160
    s_cbranch_scc1 k1_w1
    """)
    a("""
    s_lshl_b32 s18, s2, 2
    s_add_u32 s18, s18, s3
    s_lshl_b32 s19, s18, 12
    s_mul_i32 s20, s3, %d
    v_lshlrev_b32 v3, 4, v2
    v_subrev_u32 v4, 4, v3
    v_lshlrev_b32 v5, 3, v2
    v_lshl_add_u32 v5, v1, 12, v5
    s_lshl_b32 s21, s18, 1
    v_mov_b32 v6, s21
    v_cmp_eq_u32 vcc, 0, v2
    v_mov_b32 v7, 0x7fffffff
    s_lshl_b32 s22, s2, 14
    v_cndmask_b32 v6, v7, v6, vcc
    s_lshl_b32 s23, s2, 4
    s_waitcnt lgkmcnt(0)
    s_add_u32 s24, s4, s19
    s_addc_u32 s25, s5, 0
    s_movk_i32 s26, 4096
    s_mov_b32 s27, 0x20000
    """ % WREG)
    srd(a, 28, 6, 1280); srd(a, 32, 16, ACT, U_OFF)
    for e in range(4):
        a(f"buffer_load_dwordx4 v[{16+4*e}:{19+4*e}], v3, s[24:27], 0 offen offset:{1024*e}")
    a("buffer_load_dword v32, v4, s[24:27], 0 offen")
    for e in range(1, 4):
        a(f"buffer_load_dword v{32+e}, v3, s[24:27], 0 offen offset:{1024*e-4}")
    a("buffer_load_ushort v36, v6, s[28:31], 0 offen")
    a(f"s_add_u32 m0, s20, {UB+512}")
    srd(a, 36, 16, ACT, QX_OFF)
    for e in range(4):
        a(f"buffer_load_dwordx4 v3, s[32:35], s19 offen offset:{1024*e} lds")
    srd(a, 40, 16, 16384, ST_OFF); srd(a, 44, 16, ACT, X1_OFF)
    for e in range(8): a(f"buffer_load_dwordx2 v[{192+2*e}:{193+2*e}], v5, s[36:39], s22 offen offset:{512*e}")
    for e in range(8): a(f"buffer_load_dwordx2 v[{208+2*e}:{209+2*e}], v5, s[40:43], 0 offen offset:{512*e}")
    a(f"s_add_u32 s48, s16, {hex(MOD_OFF)}")
    a(f"s_addc_u32 s49, s17, 0")
    a(f"s_add_u32 s48, s48, s23")
    a(f"s_addc_u32 s49, s49, 0")
    a("s_load_dwordx4 s[52:55], s[48:49], 0")
    a("s_load_dwordx4 s[56:59], s[48:49], 2560")
    a("s_load_dwordx4 s[60:63], s[48:49], 5120")
    a(f"""
    v_mov_b32 v8, 0
    v_mov_b32 v9, 0
    v_lshl_add_u32 v10, v2, 3, s20
    ds_write_b64 v10, v[8:9] offset:{UB}
    v_and_b32 v11, 3, v2
    v_lshl_add_u32 v11, v11, 3, s20
    ds_write_b64 v11, v[8:9]
    ds_write_b64 v11, v[8:9] offset:{HO}
    v_add_u32 v10, s20, v3
    v_and_b32 v11, 15, v2
    v_lshrrev_b32 v12, 4, v2
    v_lshlrev_b32 v13, 1, v11
    v_lshlrev_b32 v14, 4, v12
    v_sub_u32 v13, v13, v14
    v_and_b32 v15, 1, v2
    v_cmp_eq_u32 vcc, 0, v15
    v_mov_b32 v15, {HO+2+50}
    v_mov_b32 v7, 50
    v_cndmask_b32 v15, v7, v15, vcc
    v_add3_u32 v56, v13, v15, s20
    v_add_u32 v57, 1024, v56
    v_add_u32 v58, 2048, v56
    v_add_u32 v59, 3072, v56
    v_lshl_add_u32 v60, v11, 5, v14
    v_add_u32 v60, {UB+32}, v60
    v_add_u32 v60, s20, v60
    s_mul_i32 s21, s3, {YST}
    v_lshlrev_b32 v61, 5, v11
    v_lshl_add_u32 v61, v12, 3, v61
    v_add_u32 v61, s21, v61
    v_add_u32 v61, {YB}, v61
    v_bfe_u32 v13, v2, 2, 2
    v_mul_u32_u24 v62, {YST}, v13
    v_lshl_add_u32 v62, v12, 5, v62
    v_and_b32 v13, 3, v2
    v_lshl_add_u32 v62, v13, 3, v62
    v_lshl_add_u32 v62, v1, 10, v62
    v_add_u32 v62, {YB}, v62
    s_waitcnt vmcnt(20)
    v_lshlrev_b32 v36, 16, v36
    v_lshlrev_b32 v37, 16, v16
    v_add_f32 v36, v36, v37
    v_cvt_pk_bf16_f32 v36, v36, v36
    s_mov_b32 s21, 0xffff
    v_bfi_b32 v16, s21, v36, v16
    """)
    for e in range(4):
        a(f"ds_write_b128 v10, v[{16+4*e}:{19+4*e}] offset:{32+1024*e}")
        a(f"v_alignbit_b32 v{40+4*e}, v{16+4*e}, v{32+e}, 16")
        for j in range(1, 4): a(f"v_alignbit_b32 v{40+4*e+j}, v{16+4*e+j}, v{16+4*e+j-1}, 16")
        a(f"ds_write_b128 v10, v[{40+4*e}:{43+4*e}] offset:{HO+32+1024*e}")
    a("s_waitcnt vmcnt(16) lgkmcnt(0)")
    stamp(a, 1, 1, 16)
    def rdA(it, g):
        s = it & 1; r = 64+64*s+4*g; o = 16*it+128*(g & 1)
        return [f"ds_read2_b32 v[{r}:{r+1}], v{56+(g>>1)} offset0:{o} offset1:{o+1}",
                f"ds_read2_b32 v[{r+2}:{r+3}], v{56+(g>>1)} offset0:{o+2} offset1:{o+3}"]
    def rdB(it, d):
        s = it & 1; r = 96+64*s+4*d
        return [f"ds_read_b128 v[{r}:{r+3}], v60 offset:{448-64*it+512*d}"]
    def reads(it):
        out = []
        for i in range(8): out += rdB(it, i) + rdA(it, i)
        return out
    for x in reads(0): a(x)
    side = []
    side.append("s_waitcnt vmcnt(0)")
    for c in range(4):
        side += [f"v_mov_b32 v{48+c}, s{56+c}", f"v_add_f32 v{48+c}, 1.0, v{48+c}", f"v_cvt_pk_bf16_f32 v{48+c}, v{48+c}, v{48+c}",
                 f"v_lshlrev_b32 v{48+c}, 16, v{48+c}", f"v_mul_f32 v{48+c}, s{60+c}, v{48+c}",
                 f"v_mov_b32 v{52+c}, s{52+c}", f"v_mul_f32 v{52+c}, s{60+c}, v{52+c}"]
    for e in range(8):
        for c in range(4):
            q = 224+4*e+c; src = 192+2*e+(c >> 1)
            side.append(f"v_lshlrev_b32 v{q}, 16, v{src}" if c % 2 == 0 else f"v_and_b32 v{q}, 0xffff0000, v{src}")
            side.append(f"v_fma_f32 v{q}, v{q}, v{208+2*e}, v{209+2*e}")
            side.append(f"v_fma_f32 v{q}, v{q}, v{48+c}, v{52+c}")
    for it in range(8):
        s = it & 1
        a("s_waitcnt lgkmcnt(0)")
        nxt = reads(it+1) if it < 7 else []
        k = 0
        for n in range(8):
            for g in range(n+1):
                d = n-g
                c = "0" if (it == 0 and g == 0) else f"v[{16+4*n}:{19+4*n}]"
                a(f"v_mfma_f32_16x16x32_bf16 v[{16+4*n}:{19+4*n}], v[{64+64*s+4*g}:{67+64*s+4*g}], v[{96+64*s+4*d}:{99+64*s+4*d}], {c}")
                if nxt: a(nxt.pop(0))
                elif it >= 1 and side:
                    a(side.pop(0))
                    if side: a(side.pop(0))
    assert not side
    stamp(a, 1, 2, 16)
    for n in range(8):
        if n == 7: a("s_nop 7")
        a(f"v_cvt_pk_bf16_f32 v{64+2*n}, v{16+4*n}, v{17+4*n}")
        a(f"v_cvt_pk_bf16_f32 v{65+2*n}, v{18+4*n}, v{19+4*n}")
        a(f"ds_write_b64 v61, v[{64+2*n}:{65+2*n}] offset:{512*n}")
    a("s_waitcnt lgkmcnt(0)")
    a("s_barrier")
    for e in range(8): a(f"ds_read_b64_tr_b16 v[{96+2*e}:{97+2*e}], v62 offset:{128*e}")
    for e in range(8):
        unpack(a, 112, 113, 192+2*e); unpack(a, 114, 115, 193+2*e)
        a(f"s_waitcnt lgkmcnt({7-e})")
        unpack(a, 116, 117, 96+2*e); unpack(a, 118, 119, 97+2*e)
        a(f"v_pk_fma_f32 v[112:113], v[{224+4*e}:{225+4*e}], v[116:117], v[112:113]")
        a(f"v_pk_fma_f32 v[114:115], v[{226+4*e}:{227+4*e}], v[118:119], v[114:115]")
        a(f"v_cvt_pk_bf16_f32 v{128+2*e}, v112, v113")
        a(f"v_cvt_pk_bf16_f32 v{129+2*e}, v114, v115")
        a(f"buffer_store_dwordx2 v[{128+2*e}:{129+2*e}], v5, s[44:47], s22 offen offset:{512*e}")
    a("s_branch k1_fin")
    TS, TB = 81920, 81920+2048
    a("k1_w1:")
    a(f"""
    s_sub_u32 s18, s2, 160
    s_cmp_ge_u32 s18, 27
    s_cselect_b32 s19, 1, 0
    s_mul_i32 s20, s19, 27
    s_sub_u32 s18, s18, s20
    s_mul_i32 s20, s19, {320*3456}
    s_lshl_b32 s21, s18, 7
    s_add_u32 s20, s20, s21
    s_mul_i32 s21, s3, {8*3456}
    s_add_u32 s20, s20, s21
    s_lshl_b32 s21, s3, 10
    v_lshrrev_b32 v3, 3, v2
    v_mul_u32_u24 v3, 3456, v3
    v_and_b32 v4, 7, v2
    v_lshl_add_u32 v3, v4, 4, v3
    s_mul_i32 s22, s19, 1280
    v_lshl_add_u32 v4, v0, 3, s22
    s_waitcnt lgkmcnt(0)
    """)
    srd(a, 24, 8, 640*3456); srd(a, 28, 10, 640*3456); srd(a, 32, 16, 15360, MOD_OFF)
    a("s_movk_i32 s22, 7680"); a("s_movk_i32 s23, 10240")
    a("buffer_load_dwordx2 v[8:9], v4, s[32:35], s22 offen")
    a("buffer_load_dwordx2 v[10:11], v4, s[32:35], s23 offen")
    for j in range(10):
        a("s_mov_b32 m0, s21")
        a("s_add_u32 s21, s21, 4096")
        a("buffer_load_dwordx4 v3, s[24:27], s20 offen lds")
        a(f"s_add_u32 m0, m0, 40960")
        a("s_nop 0")
        a("buffer_load_dwordx4 v3, s[28:31], s20 offen lds")
        a(f"s_add_u32 s20, s20, {32*3456}")
    srd(a, 36, 16, 108*40960, W1P_OFF); srd(a, 40, 16, 4*108*256, C12_OFF)
    a(f"""
    s_waitcnt vmcnt(20)
    v_add_f32 v10, 1.0, v10
    v_add_f32 v11, 1.0, v11
    v_cvt_pk_bf16_f32 v12, v10, v11
    v_cvt_pk_bf16_f32 v8, v8, v9
    v_lshlrev_b32 v10, 16, v12
    v_and_b32 v11, 0xffff0000, v12
    v_lshlrev_b32 v4, 3, v0
    v_lshlrev_b32 v5, 2, v0
    ds_write_b64 v4, v[10:11] offset:{TS-32768}
    ds_write_b32 v5, v8 offset:{TB-32768}
    """.replace("v_lshlrev_b32 v4, 3, v0", "v_lshlrev_b32 v4, 3, v0\nv_add_u32 v4, 32768, v4").replace("v_lshlrev_b32 v5, 2, v0", "v_lshlrev_b32 v5, 2, v0\nv_add_u32 v5, 32768, v5"))
    a(f"""
    v_bfe_u32 v7, v2, 4, 1
    v_mul_u32_u24 v6, 40960, v7
    v_lshrrev_b32 v7, 5, v2
    v_lshl_add_u32 v6, v7, 10, v6
    v_bfe_u32 v12, v2, 2, 2
    v_lshl_add_u32 v6, v12, 7, v6
    v_lshl_add_u32 v6, v1, 5, v6
    v_and_b32 v12, 1, v2
    v_lshl_add_u32 v6, v12, 4, v6
    v_bfe_u32 v12, v2, 1, 1
    v_lshl_add_u32 v6, v12, 3, v6
    v_lshlrev_b32 v13, 5, v7
    v_add_u32 v13, {TS}, v13
    v_lshlrev_b32 v14, 4, v7
    v_add_u32 v14, {TB}, v14
    v_lshlrev_b32 v15, 4, v2
    s_lshl_b32 s20, s18, 2
    s_add_u32 s20, s20, s3
    s_mul_i32 s21, s20, 40960
    s_mul_i32 s22, s19, 20480
    s_add_u32 s21, s21, s22
    s_mov_b32 s22, 0x3f803f80
    v_mov_b32 v16, 0
    v_mov_b32 v17, 0
    s_waitcnt vmcnt(0) lgkmcnt(0)
    s_barrier
    """)
    def w1rd(ks):
        b = 32+16*(ks & 1)
        return [f"ds_read_b64_tr_b16 v[{b}:{b+1}], v6 offset:{2048*ks}", f"ds_read_b64_tr_b16 v[{b+2}:{b+3}], v6 offset:{2048*ks+512}",
                f"ds_read_b128 v[{b+4}:{b+7}], v13 offset:{64*ks}", f"ds_read_b128 v[{b+8}:{b+11}], v13 offset:{64*ks+16}",
                f"ds_read_b128 v[{b+12}:{b+15}], v14 offset:{32*ks}"]
    for x in w1rd(0): a(x)
    for ks in range(20):
        b = 32+16*(ks & 1); o = 64+4*(ks & 3)
        if ks < 19:
            for x in w1rd(ks+1): a(x)
            a("s_waitcnt lgkmcnt(5)")
        else: a("s_waitcnt lgkmcnt(0)")
        for j in range(4):
            unpack(a, 20+2*j, 21+2*j, b+j)
            a(f"v_dot2c_f32_bf16 v17, v{b+12+j}, v{b+j}")
        for j in range(4): a(f"v_pk_mul_f32 v[{20+2*j}:{21+2*j}], v[{20+2*j}:{21+2*j}], v[{b+4+2*j}:{b+5+2*j}]")
        for j in range(4): a(f"v_cvt_pk_bf16_f32 v{o+j}, v{20+2*j}, v{21+2*j}")
        a(f"buffer_store_dwordx4 v[{o}:{o+3}], v15, s[36:39], s21 offen offset:{1024*(ks&3)}")
        for j in range(4): a(f"v_dot2c_f32_bf16 v16, s22, v{o+j}")
        if ks & 3 == 3: a("s_add_u32 s21, s21, 4096")
    a(f"""
    s_mul_i32 s21, s19, {2*108*256}
    s_lshl_b32 s20, s20, 8
    s_add_u32 s21, s21, s20
    v_mul_u32_u24 v4, {108*256}, v7
    v_and_b32 v5, 31, v2
    v_lshl_add_u32 v4, v5, 3, v4
    buffer_store_dwordx2 v[16:17], v4, s[40:43], s21 offen
    s_branch k1_fin
    """)
    a("k1_w2:")
    a(f"""
    s_sub_u32 s18, s2, 214
    s_and_b32 s19, s18, 3
    s_lshr_b32 s18, s18, 2
    s_mul_i32 s19, s19, 14
    s_min_u32 s19, s19, 40
    s_mul_i32 s20, s19, {32*1280}
    s_lshl_b32 s21, s18, 7
    s_add_u32 s20, s20, s21
    s_mul_i32 s21, s3, {8*1280}
    s_add_u32 s20, s20, s21
    s_lshl_b32 s21, s3, 10
    v_lshrrev_b32 v3, 3, v2
    v_mul_u32_u24 v3, 1280, v3
    v_and_b32 v4, 7, v2
    v_lshl_add_u32 v3, v4, 4, v3
    s_waitcnt lgkmcnt(0)
    """)
    srd(a, 24, 12, 1728*1280)
    for j in range(14):
        a("s_mov_b32 m0, s21")
        a("s_add_u32 s21, s21, 4096")
        a("buffer_load_dwordx4 v3, s[24:27], s20 offen lds")
        a(f"s_add_u32 s20, s20, {32*1280}")
    srd(a, 36, 16, 40*55296, W2P_OFF)
    a(f"""
    v_lshrrev_b32 v7, 4, v2
    v_lshlrev_b32 v6, 10, v7
    v_bfe_u32 v12, v2, 2, 2
    v_lshl_add_u32 v6, v12, 7, v6
    v_lshl_add_u32 v6, v1, 5, v6
    v_and_b32 v12, 3, v2
    v_lshl_add_u32 v6, v12, 3, v6
    v_lshlrev_b32 v15, 4, v2
    s_lshl_b32 s20, s18, 2
    s_add_u32 s20, s20, s3
    s_mul_i32 s21, s20, 55296
    s_lshl_b32 s22, s19, 10
    s_add_u32 s21, s21, s22
    s_waitcnt vmcnt(0)
    s_barrier
    """)
    for half in range(2):
        for ks in range(7*half, 7*half+7):
            b = 16+4*ks
            a(f"ds_read_b64_tr_b16 v[{b}:{b+1}], v6 offset:{4096*ks}")
            a(f"ds_read_b64_tr_b16 v[{b+2}:{b+3}], v6 offset:{4096*ks+512}")
        for ks in range(7*half, 7*half+7):
            b = 16+4*ks
            a(f"s_waitcnt lgkmcnt({2*(7*half+6-ks)})")
            a(f"buffer_store_dwordx4 v[{b}:{b+3}], v15, s[36:39], s21 offen offset:{1024*(ks&3)}")
            if ks & 3 == 3: a("s_add_u32 s21, s21, 4096")
    a("k1_fin:")
    stamp_flush(a, 1, 3, 16, 1, 2)
    a("k1_end:")
    a("s_endpgm")

def k2(a):
    XB = 96
    ACC = [16, 32]
    TBL = 122880
    NA = 10
    a(".p2align 8"); a("k2_kernel:")
    stamp(a, 2, 0, 16)
    a(f"""
    s_cmp_ge_u32 s2, 256
    s_cbranch_scc1 k2_end
    s_load_dwordx2 s[16:17], s[0:1], 112
    v_lshrrev_b32 v1, 6, v0
    v_and_b32 v2, 63, v0
    s_and_b32 s4, s2, 1
    v_readfirstlane_b32 s3, v1
    s_lshl_b32 s4, s4, 3
    s_bfe_u32 s5, s2, 0x30003
    s_add_u32 s4, s4, s5
    s_bfe_u32 s5, s2, 0x20001
    s_lshl_b32 s5, s5, 2
    s_lshr_b32 s6, s2, 6
    s_add_u32 s5, s5, s6
    s_mul_i32 s5, s5, 27
    s_lshr_b32 s5, s5, 2
    v_and_b32 v3, 31, v2
    v_lshrrev_b32 v4, 5, v2
    s_lshl_b32 s6, s4, 10
    v_lshl_add_u32 v5, v1, 8, s6
    v_lshl_add_u32 v5, v3, 3, v5
    v_lshl_add_u32 v5, v4, 15, v5
    v_add_u32 v6, 16384, v5
    v_lshlrev_b32 v7, 4, v2
    s_mul_i32 s8, s5, 40960
    s_lshl_b32 s9, s3, 11
    s_add_u32 s8, s8, s9
    s_lshl_b32 s10, s5, 8
    v_lshl_add_u32 v8, v0, 3, s10
    s_waitcnt lgkmcnt(0)
    """)
    srd(a, 20, 16, ACT, X1_OFF); srd(a, 24, 16, 108*40960, W1P_OFF); srd(a, 28, 16, 4*108*256, C12_OFF)
    def dma_group():
        return ["s_mov_b32 m0, s9", "s_add_u32 s9, s9, 8192",
                "buffer_load_dwordx4 v7, s[24:27], s8 offen lds",
                "buffer_load_dwordx4 v7, s[24:27], s8 offen offset:1024 lds",
                "s_add_u32 s8, s8, 8192"]
    a("s_mov_b32 s10, 0")
    for i in range(4):
        a(f"buffer_load_dwordx2 v[{48+2*i}:{49+2*i}], v8, s[28:31], s10 offen")
        if i < 3: a(f"s_add_u32 s10, s10, {108*256}")
    for j in range(5):
        for x in dma_group(): a(x)
    a("s_mov_b32 s10, 0")
    def xload(ks):
        return [f"buffer_load_dwordx2 v[{XB+4*ks}:{XB+4*ks+1}], v5, s[20:23], s10 offen",
                f"buffer_load_dwordx2 v[{XB+4*ks+2}:{XB+4*ks+3}], v6, s[20:23], s10 offen",
                "s_add_u32 s10, s10, 65536"]
    for ks in range(24):
        for x in xload(ks): a(x)
    srd(a, 32, 16, 128*55296, HH_OFF)
    a(f"""
    s_lshl_b32 s6, s4, 3
    v_lshl_add_u32 v9, v1, 1, s6
    v_bfe_u32 v10, v2, 4, 1
    v_add_u32 v9, v9, v10
    v_mul_u32_u24 v9, 55296, v9
    v_lshl_add_u32 v9, v4, 8, v9
    v_and_b32 v10, 15, v2
    v_lshl_add_u32 v9, v10, 4, v9
    s_lshl_b32 s11, s5, 9
    v_lshrrev_b32 v10, 5, v0
    v_lshlrev_b32 v10, 8, v10
    v_lshl_add_u32 v10, v3, 2, v10
    v_add_u32 v10, {TBL}, v10
    v_lshlrev_b32 v11, 4, v4
    v_add_u32 v11, {TBL}, v11
    s_mov_b32 s12, 0x3f803f80
    v_mov_b32 v12, 0
    v_mov_b32 v13, 0
    v_mov_b32 v14, v7
    s_waitcnt vmcnt(58)
    v_pk_add_f32 v[48:49], v[48:49], v[50:51]
    v_pk_add_f32 v[52:53], v[52:53], v[54:55]
    v_pk_add_f32 v[48:49], v[48:49], v[52:53]
    ds_write2_b32 v10, v48, v49 offset0:0 offset1:32
    s_waitcnt vmcnt(48) lgkmcnt(0)
    s_barrier
    """)
    stamp(a, 2, 1, 16)
    def wrd(ks):
        r = 4*(ks % NA)
        return f"ds_read_b128 a[{r}:{r+3}], v14 offset:{1024*ks}"
    LA = 8
    for ks in range(LA): a(wrd(ks))
    def epilogue(accb):
        e = []
        for q in range(4): e.append(f"ds_read_b128 v[{48+4*q}:{51+4*q}], v11 offset:{32*q}")
        for q in range(4): e.append(f"ds_read_b128 v[{64+4*q}:{67+4*q}], v11 offset:{128+32*q}")
        e.append("v_add_u32 v11, 256, v11")
        e2 = []
        for i in range(16): e2.append(f"v_fma_f32 v{48+i}, v13, v{48+i}, v{64+i}")
        for i in range(16): e2.append(f"v_fma_f32 v{48+i}, v15, v{accb+i}, v{48+i}")
        for i in range(8): e2.append(f"v_max_f32 v{48+i}, 0, v{48+i}")
        for i in range(8): e2.append(f"v_mul_f32 v{48+i}, v{48+i}, v{56+i}")
        for i in range(4): e2.append(f"v_cvt_pk_bf16_f32 v{80+i}, v{48+2*i}, v{49+2*i}")
        e2.append("buffer_store_dwordx4 v[80:83], v9, s[32:35], s11 offen")
        e2.append("s_add_u32 s11, s11, 512")
        return e, e2
    def tile(t_kind, accb, prevb):
        pend = LA
        q = list(range(LA))
        if prevb is not None: e1, e2 = epilogue(prevb)
        else: e1, e2 = [], []
        xl = list(range(24, 40)) if t_kind == 'first' else []
        vm_after = None
        for ks in range(40):
            idx = q.index(ks) if ks in q else None
            if idx is not None:
                n_after = len(q)-1-idx
                a(f"s_waitcnt lgkmcnt({min(n_after,15)})")
                q = q[idx+1:]
            if t_kind == 'first':
                issued = min(40, 24+ks)
                extra = 0
                if ks >= 16: extra = min(20, 2*(ks-16))
                a(f"s_waitcnt vmcnt({2*(issued-ks-1)+extra})")
            r = 4*(ks % NA)
            c = "0" if ks == 0 else f"v[{accb}:{accb+15}]"
            a(f"v_mfma_f32_32x32x16_bf16 v[{accb}:{accb+15}], a[{r}:{r+3}], v[{XB+4*ks}:{XB+4*ks+3}], {c}")
            if ks+LA < 40:
                a(wrd(ks+LA)); q.append(ks+LA)
            if t_kind == 'first':
                if xl:
                    for x in xload(xl.pop(0)): a(x)
                elif ks < 26:
                    for x in dma_group(): a(x)
                for j in range(4):
                    a(f"v_dot2c_f32_bf16 v12, s12, v{XB+4*ks+j}")
                    a(f"v_dot2c_f32_bf16 v13, v{XB+4*ks+j}, v{XB+4*ks+j}")
            else:
                if ks in (0, 1, 2, 3):
                    a(e1.pop(0)); a(e1.pop(0)); q += [-1, -1]
                    if ks == 3: a(e1.pop(0))
                elif ks >= 13:
                    for _ in range(3):
                        if e2: a(e2.pop(0))
            if ks == 34:
                a("s_add_u32 s13, s13, 1")
                a("s_cmp_ge_u32 s13, 6")
                lw = a.label("w0"); ld = a.label("wd")
                a(f"s_cbranch_scc1 {lw}")
                a("s_waitcnt vmcnt(10) lgkmcnt(0)")
                a(f"s_branch {ld}")
                a(f"{lw}:")
                a("s_waitcnt vmcnt(0) lgkmcnt(0)")
                a(f"{ld}:")
                a("s_barrier")
                q = []
                a("s_add_u32 s14, s14, 40960")
                a("s_cmp_ge_u32 s14, 122880")
                a("s_cselect_b32 s14, 0, s14")
                a("v_add_u32 v14, s14, v7")
            if ks >= 35:
                todo = {35: [0, 1], 36: [2, 3], 37: [4, 5], 38: [6], 39: [7]}[ks]
                for j in todo: a(wrd(j)); q.append(j)
                if ks == 35:
                    ls = a.label("nodma")
                    a("s_cmp_ge_u32 s13, 5")
                    a(f"s_cbranch_scc1 {ls}")
                    a("s_cmp_ge_u32 s9, 122880")
                    a("s_cselect_b32 s15, 122880, 0")
                    a("s_sub_u32 s9, s9, s15")
                    for j in range(5):
                        for x in dma_group(): a(x)
                    a(f"{ls}:")
        assert not e1 and not e2
    a("s_mov_b32 s13, 0"); a("s_mov_b32 s14, 0")
    tile('first', ACC[0], None)
    a("""
    s_nop 2
    v_mov_b32 v84, v12
    v_mov_b32 v85, v13
    s_nop 1
    v_permlane32_swap_b32 v84, v12
    v_permlane32_swap_b32 v85, v13
    v_add_f32 v12, v84, v12
    v_add_f32 v13, v85, v13
    v_mul_f32 v12, 0x3acccccd, v12
    v_mul_f32 v13, 0x3acccccd, v13
    v_fma_f32 v13, -v12, v12, v13
    v_max_f32 v13, 0, v13
    v_add_f32 v13, 0x3727c5ac, v13
    v_rsq_f32 v15, v13
    s_nop 0
    v_mul_f32 v13, v12, v15
    v_sub_f32 v13, 0, v13
    """)
    stamp(a, 2, 2, 16)
    a("k2_loop:")
    tile('mid', ACC[1], ACC[0])
    tile('mid', ACC[0], ACC[1])
    a("s_cmp_lt_u32 s13, 7")
    a("s_cbranch_scc1 k2_loop")
    stamp(a, 2, 3, 16)
    e1, e2 = epilogue(ACC[0])
    for x in e1: a(x)
    a("s_waitcnt lgkmcnt(0)")
    for x in e2: a(x)
    stamp_flush(a, 2, 4, 16, 1, 2)
    a("k2_end:")
    a("s_endpgm")

def k3(a):
    ACC = 64
    a(".p2align 8"); a("k3_kernel:")
    stamp(a, 3, 0, 16)
    a(f"""
    s_cmp_ge_u32 s2, 256
    s_cbranch_scc1 k3_end
    s_load_dwordx2 s[16:17], s[0:1], 112
    s_load_dwordx2 s[18:19], s[0:1], 96
    v_lshrrev_b32 v1, 6, v0
    v_and_b32 v2, 63, v0
    s_bfe_u32 s4, s2, 0x20001
    v_readfirstlane_b32 s3, v1
    s_lshl_b32 s4, s4, 3
    s_bfe_u32 s5, s2, 0x30003
    s_add_u32 s4, s4, s5
    s_and_b32 s5, s2, 1
    s_lshl_b32 s5, s5, 2
    s_lshr_b32 s6, s2, 6
    s_add_u32 s5, s5, s6
    s_mul_i32 s6, s3, 14
    s_cmp_eq_u32 s3, 3
    s_cselect_b32 s7, 1, 0
    s_sub_u32 s6, s6, s7
    s_lshl_b32 s6, s6, 10
    s_mul_i32 s8, s4, {4*55296}
    s_add_u32 s8, s8, s6
    s_mul_i32 s9, s5, {5*55296}
    s_add_u32 s9, s9, s6
    v_lshlrev_b32 v3, 4, v2
    """)
    for j in range(5): a(f"v_add_u32 v{4+j}, {j*55296}, v3" if j else "v_mov_b32 v4, v3")
    for j in range(4):
        a(f"s_add_u32 s10, s3, {j}"); a("s_and_b32 s10, s10, 3"); a("s_mul_i32 s10, s10, 55296")
        a(f"v_add_u32 v{9+j}, s10, v3")
    a(f"""
    v_and_b32 v13, 15, v2
    v_lshrrev_b32 v14, 4, v2
    s_lshl_b32 s10, s4, 6
    s_lshl_b32 s11, s3, 4
    s_add_u32 s10, s10, s11
    v_add_u32 v13, s10, v13
    s_mul_i32 s11, s5, 20
    v_add_u32 v14, s11, v14
    v_lshlrev_b32 v15, 14, v14
    v_lshl_add_u32 v15, v13, 3, v15
    v_lshlrev_b32 v16, 4, v14
    v_mul_u32_u24 v17, 1280, v13
    v_lshl_add_u32 v17, v14, 3, v17
    s_waitcnt lgkmcnt(0)
    """)
    srd(a, 20, 16, 128*55296, HH_OFF); srd(a, 24, 16, 40*55296, W2P_OFF)
    srd(a, 28, 16, ACT, X1_OFF); srd(a, 32, 16, 2560, MOD_OFF+12800); srd(a, 36, 18, ACT)
    def loads(j):
        b = 36*(j % 7); o = 1024*(j & 3); out = []
        if j and (j & 3) == 0: out += ["s_add_u32 s8, s8, 4096", "s_add_u32 s9, s9, 4096"]
        if j == 13:
            out += ["s_cmp_ge_u32 s3, 2", "s_cselect_b32 s10, 0x40000000, 0"]
            out += [f"v_add_u32 v{r}, s10, v{r}" for r in range(4, 13)]
        for i in range(4):
            out.append(f"buffer_load_dwordx4 a[{b+4*i}:{b+4*i+3}], v{9+i}, s[20:23], s8 offen offset:{o}")
            out.append(f"buffer_load_dwordx4 a[{b+16+4*i}:{b+16+4*i+3}], v{4+i}, s[24:27], s9 offen offset:{o}")
        out.append(f"buffer_load_dwordx4 a[{b+32}:{b+35}], v8, s[24:27], s9 offen offset:{o}")
        return out
    for j in range(7):
        for x in loads(j): a(x)
    stamp(a, 3, 1, 16)
    for j in range(14):
        b = 36*(j % 7)
        extra = 10 if j > 7 else 0
        a(f"s_waitcnt vmcnt({54 if j <= 7 else 9*(13-j)+extra})")
        for mt in range(4):
            for dt in range(5):
                r = ACC+(mt*5+dt)*4
                c = "0" if j == 0 else f"v[{r}:{r+3}]"
                a(f"v_mfma_f32_16x16x32_bf16 v[{r}:{r+3}], a[{b+16+4*dt}:{b+19+4*dt}], a[{b+4*mt}:{b+4*mt+3}], {c}")
        if j < 7:
            for x in loads(j+7): a(x)
        if j == 7:
            a("s_mov_b32 s10, 0")
            for dt in range(5):
                a(f"buffer_load_dwordx2 v[{20+2*dt}:{21+2*dt}], v15, s[28:31], s10 offen")
                a(f"buffer_load_dwordx4 v[{32+4*dt}:{35+4*dt}], v16, s[32:35], 0 offen offset:{64*dt}")
                a("s_add_u32 s10, s10, 65536")
    stamp(a, 3, 2, 16)
    for mt in range(1, 4):
        a(f"s_add_u32 s10, s3, {mt}"); a("s_and_b32 s10, s10, 3"); a("s_mul_i32 s10, s10, 15360")
        a(f"v_add_u32 v{4+mt}, s10, v3")
    a("s_mul_i32 s10, s3, 15360")
    a("v_add_u32 v4, s10, v3")
    for mt in range(1, 4):
        for dt in range(5):
            r = ACC+(mt*5+dt)*4
            a(f"ds_write_b128 v{4+mt}, v[{r}:{r+3}] offset:{(mt-1)*5120+dt*1024}")
    a("s_waitcnt lgkmcnt(0)")
    a("s_barrier")
    for dt in range(5):
        for sl in range(3):
            r = 144+(dt*3+sl)*4
            a(f"ds_read_b128 v[{r}:{r+3}], v4 offset:{sl*5120+dt*1024}")
    a("s_waitcnt vmcnt(0)")
    for dt in range(5):
        r = ACC+dt*4; p = 144+dt*12
        unpack(a, 52, 53, 20+2*dt); unpack(a, 54, 55, 21+2*dt)
        a(f"s_waitcnt lgkmcnt({3*(4-dt)})")
        for h in range(2):
            a(f"v_pk_add_f32 v[{r+2*h}:{r+2*h+1}], v[{r+2*h}:{r+2*h+1}], v[{p+2*h}:{p+2*h+1}]")
            a(f"v_pk_add_f32 v[{p+4+2*h}:{p+5+2*h}], v[{p+4+2*h}:{p+5+2*h}], v[{p+8+2*h}:{p+9+2*h}]")
        for h in range(2):
            a(f"v_pk_add_f32 v[{r+2*h}:{r+2*h+1}], v[{r+2*h}:{r+2*h+1}], v[{p+4+2*h}:{p+5+2*h}]")
        for h in range(2):
            a(f"v_pk_fma_f32 v[{52+2*h}:{53+2*h}], v[{r+2*h}:{r+2*h+1}], v[{32+4*dt+2*h}:{33+4*dt+2*h}], v[{52+2*h}:{53+2*h}]")
        a(f"v_cvt_pk_bf16_f32 v{20+2*dt}, v52, v53")
        a(f"v_cvt_pk_bf16_f32 v{21+2*dt}, v54, v55")
        a(f"buffer_store_dwordx2 v[{20+2*dt}:{21+2*dt}], v17, s[36:39], 0 offen offset:{32*dt}")
    stamp_flush(a, 3, 3, 16, 1, 2)
    a("k3_end:")
    a("s_endpgm")

def main():
    ref = open(f"cdna_kernels/{NAME}.s.ref").read().split('\n')
    hdr = [l for l in ref if l.startswith(';') and '@launch' not in l and 'Override' not in l and 'grid=ceil' not in l]
    out = '\n'.join(hdr) + '\n'
    out += "; @launch kernel=k0_kernel grid=(640,1,1) block=(256,1,1) lds=10240\n"
    out += "; @launch kernel=k1_kernel grid=(254,1,1) block=(256,1,1) lds=90112\n"
    out += "; @launch kernel=k2_kernel grid=(256,1,1) block=(256,1,1) lds=124928\n"
    out += "; @launch kernel=k3_kernel grid=(256,1,1) block=(256,1,1) lds=90112\n"
    a = Asm()
    a('.amdgcn_target "amdgcn-amd-amdhsa--gfx950"'); a(".text")
    for f in (k0, k1, k2, k3): f(a)
    out += a.text()
    out += kdesc("k0_kernel", 88) + kdesc("k1_kernel", 256) + kdesc("k2_kernel", 296, accum=256) + kdesc("k3_kernel", 208+252, accum=208)
    dst = [x for x in sys.argv[1:] if not x.startswith('--')]
    open(dst[0] if dst else f"cdna_kernels/{NAME}.s", 'w').write(out)
main()
```
